```python
import torch

def _softmax(x, axis=-1):
    return torch.softmax(x, dim=axis)
def _gelu(x):
    return torch.nn.functional.gelu(x, approximate="tanh")
def _silu(x):
    return torch.nn.functional.silu(x)
def _sigmoid(x):
    return torch.sigmoid(x)
def _layernorm(x, axis=-1, eps=1e-5):
    m = x.mean(dim=axis, keepdim=True)
    v = x.var(dim=axis, keepdim=True, unbiased=False)
    return (x - m) / torch.sqrt(v + eps)
def _scatter_add(tgt, idx, src, axis=0):
    return tgt.clone().index_add_(axis, idx, src)
def _segment_sum(src, seg, n):
    out = torch.zeros((n,) + src.shape[1:], dtype=src.dtype)
    return out.index_add_(0, seg, src)
def _pad(x, pw):
    flat = tuple(v for pair in reversed(pw) for v in pair)
    return torch.nn.functional.pad(x, flat)

kernel_name = 'parallel_sum__grouped_kv_mqa__glu_gated_bilinear__prompt'

def setup_inputs():

    _w = (lambda a: (lambda t: t.to(torch.bfloat16) if t.is_floating_point() else t)(torch.as_tensor(a)))
    def _A_setup():
        B, S, D, H = 1, 2048, 576, 32
        Dh = D // H
        return {
            "x": _w((lambda *s: torch.randn(*s, dtype=torch.bfloat16) * 0.05)(B, S, D)),
            "wq": _w((lambda *s: torch.randn(*s, dtype=torch.bfloat16) * 0.05)(D, H * Dh)),
            "wk": _w((lambda *s: torch.randn(*s, dtype=torch.bfloat16) * 0.05)(D, Dh)),
            "wv": _w((lambda *s: torch.randn(*s, dtype=torch.bfloat16) * 0.05)(D, Dh)),
            "wo": _w((lambda *s: torch.randn(*s, dtype=torch.bfloat16) * 0.05)(H * Dh, D)),
        }
    _A_in = _A_setup()

    def _B_setup():
        B, S, D, F = 1, 2048, 576, 4608
        return {
            "x": _w((lambda *s: torch.randn(*s, dtype=torch.bfloat16) * 0.05)(B, S, D)),
            "w_gate": _w((lambda *s: torch.randn(*s, dtype=torch.bfloat16) * 0.4)(D, F) * (D ** -0.5)),
            "w_up": _w((lambda *s: torch.randn(*s, dtype=torch.bfloat16) * 0.4)(D, F) * (D ** -0.5)),
            "w_down": _w((lambda *s: torch.randn(*s, dtype=torch.bfloat16) * 0.4)(F, D) * (F ** -0.5)),
        }
    _B_in = _B_setup()

    return {
        "A_x": _A_in["x"],
        "A_wq": _A_in["wq"],
        "A_wk": _A_in["wk"],
        "A_wv": _A_in["wv"],
        "A_wo": _A_in["wo"],
        "B_x": _B_in["x"],
        "B_w_gate": _B_in["w_gate"],
        "B_w_up": _B_in["w_up"],
        "B_w_down": _B_in["w_down"],
    }

def reference(A_x, A_wq, A_wk, A_wv, A_wo, B_x, B_w_gate, B_w_up, B_w_down):
    def _A_ref(x, wq, wk, wv, wo):
        B, S, D = x.shape
        H = 32
        Dh = D // H
        q = (lambda x, *d: x.permute(*d))((x @ wq).reshape(B, S, H, Dh), 0, 2, 1, 3)
        k = x @ wk
        v = x @ wv
        scores = torch.einsum("bhqd,bkd->bhqk", q, k) * (Dh ** -0.5)
        p = _softmax(scores, axis=-1)
        o = torch.einsum("bhqk,bkd->bhqd", p, v)
        return (lambda x, *d: x.permute(*d))(o, 0, 2, 1, 3).reshape(B, S, H * Dh) @ wo

    def _B_ref(x, w_gate, w_up, w_down):
        g = torch.einsum("bsd,df->bsf", x, w_gate)
        u = torch.einsum("bsd,df->bsf", x, w_up)
        h = g * u
        return torch.einsum("bsf,fd->bsd", h, w_down)

    x = A_x
    xn = _layernorm(x, axis=-1)
    return x + _A_ref(xn, A_wq, A_wk, A_wv, A_wo) + _B_ref(xn, B_w_gate, B_w_up, B_w_down)
```

```python
import sys
sys.path.insert(0, "mb")
from hiprun import *
from hiprun import _check, _hip
import numpy as np, time

def gen(nw, shape, reuse, dma, barrier, nsteps_outer=9, D=4, dmapos=1, prio=False):
    NSLOT = 12; SLAB = 12288
    L = []
    A = L.append
    nv = 512 if nw == 4 else 256
    acc_off = 256 if nw == 4 else 128
    slots = 12 if nw == 4 else 6
    frags = slots // reuse
    ndma = (12 // nw) if nw == 4 else None
    A(f"; @launch grid=(256,1,1) block=({nw*64},1,1) lds={NSLOT*SLAB}")
    A('.amdgcn_target "amdgcn-amd-amdhsa--gfx950"\n.text\n.globl mb_kernel\n.p2align 8\n.type mb_kernel,@function\nmb_kernel:')
    A("s_load_dwordx4 s[4:7], s[0:1], 0\n s_load_dwordx4 s[28:31], s[0:1], 16\n s_waitcnt lgkmcnt(0)")
    A("s_mov_b32 s8, s4\n s_mov_b32 s9, s5\n s_mov_b32 s10, 0x100000\n s_mov_b32 s11, 0x20000")
    A("s_mov_b32 s12, s6\n s_mov_b32 s13, s7\n s_mov_b32 s14, 5308416\n s_mov_b32 s15, 0x20000")
    A("s_mov_b32 s16, s28\n s_mov_b32 s17, s29\n s_mov_b32 s18, 5308416\n s_mov_b32 s19, 0x20000")
    A("s_mov_b32 s20, s30\n s_mov_b32 s21, s31\n s_mov_b32 s22, 2359296\n s_mov_b32 s23, 0x20000")
    A("v_lshrrev_b32 v1, 6, v0\n s_nop 1\n v_readfirstlane_b32 s24, v1\n v_and_b32 v2, 63, v0")
    A("s_and_b32 s25, s2, 7\n s_lshl_b32 s25, s25, 1\n s_lshr_b32 s26, s2, 3\n s_and_b32 s26, s26, 1\n s_add_u32 s25, s25, s26")
    A("s_mul_i32 s25, s25, 576")
    A("v_lshrrev_b32 v3, 2, v2\n v_mul_u32_u24 v3, 9216, v3\n v_and_b32 v4, 3, v2\n v_lshlrev_b32 v4, 4, v4\n v_add_u32 v3, v3, v4\n v_add_u32 v3, s25, v3")
    nB = 144 if reuse == 1 else 288
    Bregs = []
    A("v_lshlrev_b32 v5, 4, v0\n s_lshl_b32 s26, s2, 12\n v_add_u32 v5, s26, v5")
    nA_avail = nv - acc_off
    nb_a = min(nB, (nA_avail//4)*4)
    for i in range(nb_a//4):
        A(f"buffer_load_dwordx4 a[{4*i}:{4*i+3}], v5, s[20:23], 0 offen offset:{(i*64)%4096}")
        Bregs.append(f"a[{4*i}:{4*i+3}]")
    vb = 80 if nw == 4 else 96
    for i in range((nB-nb_a)//4):
        A(f"buffer_load_dwordx4 v[{vb+4*i}:{vb+4*i+3}], v5, s[20:23], 0 offen offset:{(i*64+32)%4096}")
        Bregs.append(f"v[{vb+4*i}:{vb+4*i+3}]")
    A("s_waitcnt vmcnt(0)")
    for i in range(16, 80): A(f"v_mov_b32 v{i}, 0")
    fr0 = 200 if nw == 4 else 112
    if nw == 8: fr0 = 112 - 0;
    NF = D if D else 4
    if nw == 8: assert fr0 + 4*NF <= 128
    if shape == '32':
        A("v_lshrrev_b32 v6, 5, v2\n v_lshlrev_b32 v6, 9, v6\n v_bfe_u32 v7, v2, 2, 2\n v_lshlrev_b32 v7, 6, v7\n v_add_u32 v6, v6, v7")
        A("v_bfe_u32 v7, v2, 4, 1\n v_lshlrev_b32 v7, 5, v7\n v_add_u32 v6, v6, v7\n v_and_b32 v7, 3, v2\n v_lshlrev_b32 v7, 3, v7\n v_add_u32 v6, v6, v7")
    else:
        A("v_lshrrev_b32 v6, 4, v2\n v_lshlrev_b32 v6, 8, v6\n v_bfe_u32 v7, v2, 2, 2\n v_lshlrev_b32 v7, 6, v7\n v_add_u32 v6, v6, v7")
        A("v_bfe_u32 v7, v2, 4, 1\n v_lshlrev_b32 v7, 5, v7\n v_add_u32 v6, v6, v7\n v_and_b32 v7, 3, v2\n v_lshlrev_b32 v7, 3, v7\n v_add_u32 v6, v6, v7")
    if nw == 8 or reuse == 2:
        A(f"s_and_b32 s26, s24, 1\n s_mul_i32 s26, s26, 6144\n v_add_u32 v6, s26, v6")
    if nw == 4:
        A("s_cmp_ge_u32 s24, 2\n s_cselect_b32 s32, s16, s12\n s_cselect_b32 s33, s17, s13\n s_mov_b32 s34, 5308416\n s_mov_b32 s35, 0x20000")
        A("s_and_b32 s26, s24, 1\n s_mul_i32 s36, s26, 48*9216")
        A("s_mul_i32 s37, s24, 3072")
    else:
        A("s_cmp_ge_u32 s24, 4\n s_cselect_b32 s32, s16, s12\n s_cselect_b32 s33, s17, s13\n s_mov_b32 s34, 5308416\n s_mov_b32 s35, 0x20000")
        A("s_and_b32 s26, s24, 3\n s_mul_i32 s36, s26, 48*9216")
        A("s_mul_i32 s37, s24, 3072")
    A("v_add_u32 v3, s36, v3")
    def dma_instr(i, soff_imm_rows):
        return [f"s_add_u32 m0, s39, {i*1024}", f"s_add_u32 s40, s38, {soff_imm_rows*9216}", "buffer_load_dwordx4 v3, s[32:35], s40 offen lds"]
    unit = 1 if nw == 4 else 2
    rows_per_unit = 96*unit
    units_per_chunk = 6//unit
    nunit_slots = NSLOT//unit
    PRE = nunit_slots - 2
    def unit_pos(u):
        c = u // units_per_chunk; k = u % units_per_chunk
        return (c % 9)*64, k*rows_per_unit
    if dma:
        for u in range(PRE):
            co, ro = unit_pos(u)
            A(f"s_mov_b32 s38, {co + ro*9216}\n s_add_u32 s39, s37, {(u % nunit_slots)*SLAB*unit}")
            for i in range(3): L.extend(dma_instr(i, 16*i))
    A("s_waitcnt vmcnt(0)\n s_barrier")
    if prio and nw == 8:
        A("s_cmp_ge_u32 s24, 4\n s_cbranch_scc0 L_np\n s_setprio 1\nL_np:")
    A("s_memtime s[44:45]\n s_memrealtime s[46:47]\n s_waitcnt lgkmcnt(0)")
    A(f"s_mov_b32 s41, 0\n s_mov_b32 s42, {(PRE // units_per_chunk)*64}")
    A(".p2align 6\nL_loop:")
    tot_frag = 12*frags
    def rd(fi):
        st = fi // frags; f = fi % frags
        off = (st % NSLOT)*SLAB + f*1024
        r = fr0 + 4*(fi % NF)
        base = "v6" if off < 65536-1024 else ("v8" if off < 2*65536-1024 else "v9")
        o = off % 65536 if False else off - (0 if base=="v6" else (64512 if base=="v8" else 129024))
        if shape == '32':
            return [f"ds_read_b64_tr_b16 v[{r}:{r+1}], {base} offset:{o}", f"ds_read_b64_tr_b16 v[{r+2}:{r+3}], {base} offset:{o+256}"]
        else:
            o2 = (o // 2048)*2048 + ((o // 1024) & 1)*0
            return [f"ds_read_b64_tr_b16 v[{r}:{r+1}], {base} offset:{o2}", f"ds_read_b64_tr_b16 v[{r+2}:{r+3}], {base} offset:{o2+1024}"]
    pre_reads = []
    body = []
    bi = 0
    for fi in range(tot_frag):
        st = fi // frags; f = fi % frags
        r = fr0 + 4*(fi % NF)
        body.append(f"s_waitcnt lgkmcnt({2*(NF-1)})")
        mm = []
        for j in range(reuse):
            if shape == '32':
                acc = 16 + 16*((f & 1)*2 + j) if reuse == 2 else 16 + 16*(f & 1)
                mm.append(f"v_mfma_f32_32x32x16_bf16 v[{acc}:{acc+15}], v[{r}:{r+3}], {Bregs[bi % len(Bregs)]}, v[{acc}:{acc+15}]"); bi += 1
            else:
                for jj in range(2):
                    acc = 16 + 4*((f & 3)*reuse*2 + j*2 + jj)
                    mm.append(f"v_mfma_f32_16x16x32_bf16 v[{acc}:{acc+3}], v[{r}:{r+3}], {Bregs[bi % len(Bregs)]}, v[{acc}:{acc+3}]"); bi += 1
        extra = []
        nfi = fi + NF
        if barrier and (nfi % (frags*unit)) == 0:
            if dma: extra.append(f"s_waitcnt vmcnt({3*(PRE-1)})")
            extra.append("s_barrier")
        dm = []
        fu = fi % (frags*unit)
        if dma:
            u = fi // (frags*unit)
            step = max(1, (frags*unit)//3)
            for i in range(3):
                if fu == i*step + dmapos % step:
                    uu = u + PRE
                    k = uu % units_per_chunk
                    cadd = (uu // units_per_chunk) - (PRE // units_per_chunk)
                    if i == 0:
                        dm.append(f"s_add_u32 s38, s42, {cadd*64 + k*rows_per_unit*9216}")
                        dm.append(f"s_add_u32 s39, s37, {(uu % nunit_slots)*SLAB*unit}")
                    dm += dma_instr(i, 16*i)
        body.append(mm[0]); body += extra
        if len(mm) > 1:
            body += dm; dm = []
            body += mm[1:]
        body += rd(nfi % tot_frag)
        body += dm
    A("v_add_u32 v8, 64512, v6\n v_add_u32 v9, 129024, v6") if False else None
    idx = L.index(".p2align 6\nL_loop:")
    L.insert(idx, "v_add_u32 v8, 64512, v6\n v_add_u32 v9, 129024, v6\n" + "\n".join(sum([rd(i) for i in range(NF)], [])))
    L.extend(body)
    A(f"s_add_u32 s42, s42, 128\n s_cmp_ge_u32 s42, 576\n s_cselect_b32 s43, 576, 0\n s_sub_u32 s42, s42, s43")
    A(f"s_add_u32 s41, s41, 1\n s_cmp_lt_u32 s41, {nsteps_outer}\n s_cbranch_scc1 L_loop")
    A("s_nop 15\n s_memtime s[48:49]\n s_memrealtime s[50:51]\n s_waitcnt lgkmcnt(0) vmcnt(0)")
    A("s_sub_u32 s48, s48, s44\n s_sub_u32 s50, s50, s46\n s_lshl_b32 s3, s2, 4\n s_add_u32 s3, s3, s24\n s_lshl_b32 s3, s3, 3")
    A("v_mov_b32 v10, s3\n v_mov_b32 v4, s48\n v_mov_b32 v5, s50\n v_cmp_eq_u32 vcc, 0, v2\n s_and_saveexec_b64 s[26:27], vcc")
    A("buffer_store_dwordx2 v[4:5], v10, s[8:11], 0 offen\n s_waitcnt vmcnt(0)\n s_endpgm")
    A(f""".section .rodata,"a"
.p2align 6
.amdhsa_kernel mb_kernel
  .amdhsa_next_free_vgpr {nv}
  .amdhsa_next_free_sgpr 64
  .amdhsa_accum_offset {acc_off}
  .amdhsa_group_segment_fixed_size 0
  .amdhsa_kernarg_size 32
  .amdhsa_user_sgpr_count 2
  .amdhsa_user_sgpr_kernarg_segment_ptr 1
  .amdhsa_system_sgpr_workgroup_id_x 1
.end_amdhsa_kernel""")
    return "\n".join(L) + "\n", NSLOT*SLAB

def bf16(a):
    u = a.astype(np.float32).view(np.uint32); return ((u + 0x7fff + ((u >> 16) & 1)) >> 16).astype(np.uint16)

if __name__ == "__main__":
    if len(sys.argv) > 1 and sys.argv[1] == "asm":
        for cfg in [(4,'32',1,1,1),(4,'16',1,1,1),(4,'16',2,1,1),(4,'32',2,1,1),(8,'16',1,1,1),(8,'32',1,1,1)]:
            a,l = gen(*cfg); build(a, "mb_kernel", 4, "mb_k.co"); print("ok", cfg)
        raise SystemExit
    rng = np.random.default_rng(0)
    out = DeviceBuffer(1<<20)
    wg = DeviceBuffer.from_numpy(bf16(rng.standard_normal((576,4608))*0.4/24))
    wu = DeviceBuffer.from_numpy(bf16(rng.standard_normal((576,4608))*0.4/24))
    x = DeviceBuffer.from_numpy(bf16(rng.standard_normal((2048,576))))
    big = DeviceBuffer(512<<20)
    NO = 7
    for cfg in [(4,'32',1),(4,'16',1),(4,'32',2),(4,'16',2),(8,'32',1),(8,'16',1)]:
        for dma, bar in [(0,0),(0,1),(1,1)]:
            a, lds = gen(*cfg, dma, bar, nsteps_outer=NO)
            co = build(a, "mb_kernel", 4, "mb_k.co"); k = AsmKernel(co, "mb_kernel")
            res = []
            for cold in (0,0,1,1):
                if cold:
                    _check(_hip.hipMemset(big._ptr, 1, 512<<20)); sync()
                k.launch((256,1,1),(cfg[0]*64,1,1),kargs([out.ptr, wg.ptr, wu.ptr, x.ptr]), shared_mem=lds); sync()
                r = out.to_numpy(np.uint32, (256,16,2))[:, :cfg[0], :]
                c = r[:,:,0].max(axis=1); t = r[:,:,1].max(axis=1)
                res.append(f"{'C' if cold else 'W'} {np.median(c)/(NO*144):.1f}/{c.max()/(NO*144):.1f}cyc {np.median(c)/np.median(t)*100:.0f}MHz {np.median(t)/100:.1f}/{t.max()/100:.1f}us")
            print(cfg, "dma",dma,"bar",bar, " | ".join(res[1:]))
            k.unload()
```

```python
import sys
sys.path.insert(0, "mb")
from hiprun import *
from hiprun import _check, _hip
import numpy as np, time
from mb3 import bf16

def gen(NS=6, dma=1, wait=1, barrier=1, dpos=(19,21,7), ngroups=14, prefetch=0, glob=0, nt="", extra="", ne=1, nw=4):
    SLAB=12288
    L=[]; A=L.append
    A(f"; @launch grid=(256,1,1) block=({nw*64},1,1) lds={NS*SLAB+4096}")
    A('.amdgcn_target "amdgcn-amd-amdhsa--gfx950"\n.text\n.globl mb_kernel\n.p2align 8\n.type mb_kernel,@function\nmb_kernel:')
    A("s_load_dwordx4 s[4:7], s[0:1], 0\n s_load_dwordx4 s[28:31], s[0:1], 16\n s_waitcnt lgkmcnt(0)")
    A("s_memtime s[52:53]\n s_memrealtime s[54:55]")
    A("s_mov_b32 s8, s4\n s_mov_b32 s9, s5\n s_mov_b32 s10, 0x100000\n s_mov_b32 s11, 0x20000")
    A("s_mov_b32 s12, s6\n s_mov_b32 s13, s7\n s_mov_b32 s14, 5308416\n s_mov_b32 s15, 0x20000")
    A("s_mov_b32 s16, s28\n s_mov_b32 s17, s29\n s_mov_b32 s18, 5308416\n s_mov_b32 s19, 0x20000")
    A("s_mov_b32 s20, s30\n s_mov_b32 s21, s31\n s_mov_b32 s22, 2359296\n s_mov_b32 s23, 0x20000")
    A("v_lshrrev_b32 v1, 6, v0\n s_nop 1\n v_readfirstlane_b32 s24, v1\n v_and_b32 v2, 63, v0")
    A("s_and_b32 s25, s2, 7\n s_lshl_b32 s25, s25, 1\n s_lshr_b32 s26, s2, 3\n s_and_b32 s26, s26, 1\n s_add_u32 s25, s25, s26")
    A("s_mul_i32 s25, s25, 576")
    A("v_lshrrev_b32 v3, 3, v2\n v_mul_u32_u24 v3, 9216, v3\n v_and_b32 v4, 7, v2\n v_bfe_u32 v7, v2, 4, 2\n v_lshlrev_b32 v7, 1, v7\n v_xor_b32 v4, v4, v7\n v_lshlrev_b32 v4, 4, v4\n v_add_u32 v3, v3, v4\n s_and_b32 s25, s25, 0xffffff80\n v_add_u32 v3, s25, v3")
    A("v_lshlrev_b32 v5, 4, v0\n s_lshl_b32 s26, s2, 12\n v_add_u32 v5, s26, v5")
    B=[]
    for i in range(64 if nw==4 else 32):
        A(f"buffer_load_dwordx4 a[{4*i}:{4*i+3}], v5, s[20:23], 0 offen offset:{(i*64)%4096}"); B.append(f"a[{4*i}:{4*i+3}]")
    for i in range(8 if nw==4 else 4):
        A(f"buffer_load_dwordx4 v[{80+4*i}:{80+4*i+3}], v5, s[20:23], 0 offen offset:{(i*64+32)%4096}"); B.append(f"v[{80+4*i}:{80+4*i+3}]")
    if prefetch:
        A("s_lshr_b32 s26, s2, 3\n s_mul_i32 s26, s26, 324\n s_mul_i32 s27, s24, 81\n s_add_u32 s26, s26, s27\n s_and_b32 s27, s2, 7\n s_mul_i32 s27, s27, 1152")
        for t in range(2):
            A(f"v_add_u32 v10, s26, v2\n v_add_u32 v10, {64*t}, v10")
            A("v_lshrrev_b32 v11, 1, v10\n s_mov_b32 s43, 7456541\n v_mul_hi_u32 v12, v11, s43")
            A("v_mul_u32_u24 v13, 576, v12\n v_sub_u32 v13, v11, v13\n v_mul_u32_u24 v13, 9216, v13\n v_lshlrev_b32 v12, 7, v12\n v_add3_u32 v13, v13, v12, s27")
            lim = 64 if t == 0 else 17
            A(f"v_and_b32 v11, 1, v10\n v_cmp_eq_u32 vcc, 0, v11\n v_cmp_gt_u32 s[56:57], {lim}, v2\n s_and_b64 s[58:59], vcc, s[56:57]\n s_andn2_b64 s[60:61], s[56:57], vcc")
            A(f"s_mov_b64 exec, s[58:59]\n buffer_load_dword v14, v13, s[12:15], 0 offen\n s_mov_b64 exec, s[60:61]\n buffer_load_dword v15, v13, s[16:19], 0 offen\n s_mov_b64 exec, -1")
    for i in range(16,80): A(f"v_mov_b32 v{i}, 0")
    A("v_lshrrev_b32 v6, 2, v2\n v_lshlrev_b32 v6, 7, v6\n v_bfe_u32 v7, v2, 3, 2\n s_and_b32 s26, s24, 1\n s_lshl_b32 s26, s26, 1\n v_xor_b32 v7, s26, v7\n v_lshlrev_b32 v7, 5, v7\n v_add_u32 v6, v6, v7\n v_and_b32 v7, 3, v2\n v_lshlrev_b32 v7, 3, v7\n v_add_u32 v6, v6, v7\n v_xor_b32 v11, 32, v6")
    A("s_and_b32 s27, s24, 3\n s_mul_i32 s36, s27, 24*9216\n s_mul_i32 s37, s27, 3072\n v_add_u32 v3, s36, v3")
    def dma_i(i, u):
        srd = "s[12:15]" if u % 2 == 0 else "s[16:19]"
        return [f"s_add_u32 m0, s39, {i*1024}", f"s_nop 0", f"buffer_load_dwordx4 v{120+i}, {srd}, s38 offen {nt} lds"]
    for i in range(3): A(f"v_add_u32 v{120+i}, {8*i*9216}, v3")
    A("v_lshlrev_b32 v124, 4, v0\n s_lshl_b32 s26, s2, 12\n v_add_u32 v124, s26, v124\n v_add_u32 v125, 0x80000, v124\n v_and_b32 v125, 0xfffff, v125\n v_or_b32 v125, 0x80000, v125\n v_lshlrev_b32 v126, 4, v2\n v_add_u32 v126, 73728, v126")
    A("s_cmp_ge_u32 s24, 4\n s_cselect_b64 s[70:71], 0, -1\n s_cselect_b64 s[72:73], -1, 0")
    PRE=NS-2
    for u in range(NS):
        A(f"s_mov_b32 s38, {(u//12)*128 + ((u%12)//2)*96*9216}\n s_add_u32 s39, s37, {u*SLAB}")
        for i in range(3): L.extend(dma_i(i,u))
    A("s_waitcnt vmcnt(0)\n s_barrier")
    if dma and wait:
        pass
    A("s_memtime s[44:45]\n s_memrealtime s[46:47]\n s_waitcnt lgkmcnt(0)")
    A(f"s_mov_b32 s41, 0\n s_mov_b32 s64, 0\n s_mov_b32 s65, 0\n s_mov_b32 s42, {(NS//12)*128}")
    FR=[128,140] if nw==4 else [96,108]
    def rd(setr, mat, base):
        o=[]
        for kk in range(3):
            r=setr+4*kk; off=kk*4096
            bb = base if mat == 0 else "v9"
            o.append(f"ds_read_b64_tr_b16 v[{r}:{r+1}], {bb} offset:{off}")
            o.append(f"ds_read_b64_tr_b16 v[{r+2}:{r+3}], {bb} offset:{off+2048}")
        return o
    A("v_mov_b32 v8, v6\n v_mov_b32 v9, v11")
    L.extend(rd(FR[0],0,"v8"))
    A("s_waitcnt lgkmcnt(0)")
    A(".p2align 6\nL_loop:")
    for st in range(12 if nw==8 else 0):
        gaps=[[] for _ in range(12)]
        mm=[]
        for mat in range(2):
            cur=FR[mat]
            for rb in range(2):
                for kk in range(3):
                    acc=16+16*(st&1)+8*mat+4*rb
                    mm.append(f"v_mfma_f32_16x16x32_bf16 v[{acc}:{acc+3}], v[{cur+4*kk}:{cur+4*kk+3}], {B[((st//2)*3+kk)*2+rb]}, v[{acc}:{acc+3}]")
        for i,r in enumerate(rd(FR[1],1,"v8")): gaps[i//2].append(r)
        gaps[5].append("s_waitcnt lgkmcnt(0)")
        gaps[11].append("s_waitcnt lgkmcnt(0)")
        gaps[3]+= [f"s_add_u32 s64, s64, {SLAB}", f"s_cmp_eq_u32 s64, {NS*SLAB}"]
        gaps[4]+= ["s_cselect_b32 s64, 0, s64", "v_add_u32 v8, s64, v6"]
        nd=(3*(NS-2)+1)//2
        if dma and wait: gaps[6].append(f"s_waitcnt vmcnt({nd+(ne if extra and extra not in 'rw' else 0)*(NS-2)})")
        if barrier: gaps[6].append("s_barrier")
        for i,r in enumerate(rd(FR[0],0,"v8")): gaps[7+i//2].append(r)
        gaps[10].append("v_add_u32 v9, s64, v11")
        if dma:
            uu=st+NS
            k=(uu%12)//2; cadd=(uu//12)-(NS//12)
            blk=[f"s_add_u32 s38, s42, {cadd*128+k*96*9216}", f"s_add_u32 s39, s37, s65", f"s_add_u32 s65, s65, {SLAB}", f"s_cmp_eq_u32 s65, {NS*SLAB}", "s_cselect_b32 s65, 0, s65"]
            gaps[7]+=blk[:2]; gaps[8]+=blk[2:]
            gaps[9]+=[f"s_mov_b64 exec, s[{70+2*(st&1)}:{71+2*(st&1)}]"]+[x for i in range(3) for x in (dma_i(i,uu)[0], "s_nop 0", dma_i(i,uu)[2])]+["s_mov_b64 exec, -1"]
        ex={"ss":"buffer_store_dwordx4 v[120:123], v125, s[8:11], 0 offen sc1","s":"buffer_store_dwordx4 v[120:123], v125, s[8:11], 0 offen"}
        if extra and st%2==0: gaps[4].append(ex[extra])
        for i in range(12):
            A(mm[i]); L.extend(gaps[i])
    for st in range(12 if nw==4 else 0):
        gaps=[[] for _ in range(24)]
        mm=[]
        for mat in range(2):
            cur=FR[mat]
            for rb in range(4):
                for kk in range(3):
                    acc=16+32*(st&1)+16*mat+4*rb
                    mm.append(f"v_mfma_f32_16x16x32_bf16 v[{acc}:{acc+3}], v[{cur+4*kk}:{cur+4*kk+3}], {B[((st//2)*3+kk)*4+rb]}, v[{acc}:{acc+3}]")
        for i,r in enumerate(rd(FR[1],1,"v8")): gaps[i].append(r)
        gaps[11].append("s_waitcnt lgkmcnt(0)")
        gaps[23].append("s_waitcnt lgkmcnt(0)")
        gaps[8]+= [f"s_add_u32 s64, s64, {SLAB}", f"s_cmp_eq_u32 s64, {NS*SLAB}"]
        gaps[9]+= ["s_cselect_b32 s64, 0, s64", "v_add_u32 v8, s64, v6"]
        if dma and wait: gaps[12].append(f"s_waitcnt vmcnt({(3+(ne if extra and extra not in 'rw' else 0))*(NS-2)})")
        if barrier: gaps[12].append("s_barrier")
        for i,r in enumerate(rd(FR[0],0,"v8")): gaps[13+i].append(r)
        gaps[22].append("v_add_u32 v9, s64, v11")
        if dma:
            for i,p in enumerate(dpos):
                stt = st if p>12 else st-1
                uu=stt+NS
                d=dma_i(i,uu)
                if i==0:
                    k=(uu%12)//2; cadd=(uu//12)-(NS//12)
                    gaps[13]+=[f"s_add_u32 s38, s42, {cadd*128+k*96*9216}"]
                    gaps[14]+=[f"s_add_u32 s39, s37, s65"]
                    gaps[15]+=[f"s_add_u32 s65, s65, {SLAB}"]
                    gaps[16]+=[f"s_cmp_eq_u32 s65, {NS*SLAB}"]
                    gaps[17]+=["s_cselect_b32 s65, 0, s65"]
                gaps[(p-1)%24].append(d[0])
                if dma==1: gaps[p].append(d[2])
        ex={"v":"buffer_load_dwordx4 v[160:163], v124, s[20:23], 0 offen", "vs":"buffer_load_dwordx4 v[160:163], v124, s[20:23], 0 offen sc1", "a":"buffer_load_dwordx4 v[164:167], v124, s[20:23], 0 offen",
            "d":"buffer_load_dwordx4 v124, s[20:23], 0 offen lds", "s":"buffer_store_dwordx4 v[160:163], v125, s[8:11], 0 offen", "ss":"buffer_store_dwordx4 v[160:163], v125, s[8:11], 0 offen sc1",
            "r":"ds_read_b128 v[160:163], v126", "w":"ds_write_b128 v126, v[160:163]"}
        if extra:
            gaps[10].append(ex[extra])
            if ne>1: gaps[6]=[x for x in gaps[6]]; gaps[2].append(ex[extra])
        for i in range(24):
            A(mm[i]); L.extend(gaps[i])
    A(f"s_add_u32 s42, s42, 128\n s_cmp_ge_u32 s42, 512\n s_cselect_b32 s42, 0, s42")
    A(f"s_add_u32 s41, s41, 1\n s_cmp_lt_u32 s41, {ngroups}\n s_cbranch_scc1 L_loop")
    A("s_nop 15\n s_memtime s[48:49]\n s_memrealtime s[50:51]\n s_waitcnt lgkmcnt(0) vmcnt(0)")
    A("s_sub_u32 s48, s48, s44\n s_sub_u32 s50, s50, s46\n s_sub_u32 s46, s46, s54\n s_lshl_b32 s3, s2, 4\n s_add_u32 s3, s3, s24\n s_lshl_b32 s3, s3, 4")
    A("v_mov_b32 v10, s3\n v_mov_b32 v4, s48\n v_mov_b32 v5, s50\n v_mov_b32 v6, s46\n v_mov_b32 v7, 0\n v_cmp_eq_u32 vcc, 0, v2\n s_and_saveexec_b64 s[26:27], vcc")
    A("buffer_store_dwordx4 v[4:7], v10, s[8:11], 0 offen\n s_waitcnt vmcnt(0)\n s_endpgm")
    A(f""".section .rodata,"a"
.p2align 6
.amdhsa_kernel mb_kernel
  .amdhsa_next_free_vgpr {512 if nw==4 else 256}
  .amdhsa_next_free_sgpr 80
  .amdhsa_accum_offset {256 if nw==4 else 128}
  .amdhsa_group_segment_fixed_size 0
  .amdhsa_kernarg_size 32
  .amdhsa_user_sgpr_count 2
  .amdhsa_user_sgpr_kernarg_segment_ptr 1
  .amdhsa_system_sgpr_workgroup_id_x 1
.end_amdhsa_kernel""")
    return "\n".join(L)+"\n", NS*SLAB+4096

cfgs=[dict(),dict(nw=8),dict(nw=8,dma=0),dict(dma=0),dict(extra="s"),dict(nw=8,extra="s")]
if len(sys.argv)>1:
    for c in cfgs:
        a,l=gen(**c); build(a,"mb_kernel",4,"mb_k.co")
    print("ok"); raise SystemExit
rng = np.random.default_rng(0)
out = DeviceBuffer(1<<20)
wg = DeviceBuffer.from_numpy(bf16(rng.standard_normal((576,4608))*0.4/24))
wu = DeviceBuffer.from_numpy(bf16(rng.standard_normal((576,4608))*0.4/24))
x = DeviceBuffer.from_numpy(bf16(rng.standard_normal((2048,576))))
big = DeviceBuffer(512<<20)
NG=5
for c in cfgs:
    a,lds=gen(**c, ngroups=NG); co=build(a,"mb_kernel",4,"mb_k.co"); k=AsmKernel(co,"mb_kernel")
    res=[]
    for cold in (0,0,0):
        if cold: _check(_hip.hipMemset(big._ptr, 1, 512<<20)); sync()
        k.launch((256,1,1),(c.get('nw',4)*64,1,1),kargs([out.ptr, wg.ptr, wu.ptr, x.ptr]), shared_mem=lds); sync()
        r = out.to_numpy(np.uint32, (256,16,4))[:, :c.get('nw',4), :]
        cc = r[:,:,0].max(axis=1); t = r[:,:,1].max(axis=1); p=r[:,:,2].max(axis=1)
        res.append(f"{'C' if cold else 'W'} {np.median(cc)/(NG*144):.1f}/{cc.max()/(NG*144):.1f}cyc {np.median(cc)/np.median(t)*100:.0f}MHz {np.median(t)/100:.1f}/{t.max()/100:.1f}us pro {np.median(p)/100:.1f}")
    print(c, " | ".join(res[1:]))
    k.unload()
```

```python
import sys
sys.path.insert(0, "mb")
from hiprun import *
from hiprun import _check, _hip
import numpy as np, time
from mb3 import bf16

def gen(NS=6, dma=1, wait=1, barrier=1, dpos=(19,21,7), ngroups=14, prefetch=0, glob=0, nt="", extra="", ne=1, stag=0):
    SLAB=12288
    L=[]; A=L.append
    A(f"; @launch grid=(256,1,1) block=(256,1,1) lds={NS*SLAB+4096}")
    A('.amdgcn_target "amdgcn-amd-amdhsa--gfx950"\n.text\n.globl mb_kernel\n.p2align 8\n.type mb_kernel,@function\nmb_kernel:')
    A("s_load_dwordx4 s[4:7], s[0:1], 0\n s_load_dwordx4 s[28:31], s[0:1], 16\n s_waitcnt lgkmcnt(0)")
    A("s_memtime s[52:53]\n s_memrealtime s[54:55]")
    A("s_mov_b32 s8, s4\n s_mov_b32 s9, s5\n s_mov_b32 s10, 0x100000\n s_mov_b32 s11, 0x20000")
    A("s_mov_b32 s12, s6\n s_mov_b32 s13, s7\n s_mov_b32 s14, 5308416\n s_mov_b32 s15, 0x20000")
    A("s_mov_b32 s16, s28\n s_mov_b32 s17, s29\n s_mov_b32 s18, 5308416\n s_mov_b32 s19, 0x20000")
    A("s_mov_b32 s20, s30\n s_mov_b32 s21, s31\n s_mov_b32 s22, 2359296\n s_mov_b32 s23, 0x20000")
    A("v_lshrrev_b32 v1, 6, v0\n s_nop 1\n v_readfirstlane_b32 s24, v1\n v_and_b32 v2, 63, v0")
    A("s_and_b32 s25, s2, 7\n s_lshl_b32 s25, s25, 1\n s_lshr_b32 s26, s2, 3\n s_and_b32 s26, s26, 1\n s_add_u32 s25, s25, s26")
    A("s_mul_i32 s25, s25, 576")
    A("v_lshrrev_b32 v3, 3, v2\n v_mul_u32_u24 v3, 9216, v3\n v_and_b32 v4, 7, v2\n v_bfe_u32 v7, v2, 4, 2\n v_lshlrev_b32 v7, 1, v7\n v_xor_b32 v4, v4, v7\n v_lshlrev_b32 v4, 4, v4\n v_add_u32 v3, v3, v4\n s_and_b32 s25, s25, 0xffffff80\n v_add_u32 v3, s25, v3")
    A("v_lshlrev_b32 v5, 4, v0\n s_lshl_b32 s26, s2, 12\n v_add_u32 v5, s26, v5")
    B=[]
    for i in range(64):
        A(f"buffer_load_dwordx4 a[{4*i}:{4*i+3}], v5, s[20:23], 0 offen offset:{(i*64)%4096}"); B.append(f"a[{4*i}:{4*i+3}]")
    for i in range(8):
        A(f"buffer_load_dwordx4 v[{80+4*i}:{80+4*i+3}], v5, s[20:23], 0 offen offset:{(i*64+32)%4096}"); B.append(f"v[{80+4*i}:{80+4*i+3}]")
    if prefetch:
        A("s_lshr_b32 s26, s2, 3\n s_mul_i32 s26, s26, 324\n s_mul_i32 s27, s24, 81\n s_add_u32 s26, s26, s27\n s_and_b32 s27, s2, 7\n s_mul_i32 s27, s27, 1152")
        for t in range(2):
            A(f"v_add_u32 v10, s26, v2\n v_add_u32 v10, {64*t}, v10")
            A("v_lshrrev_b32 v11, 1, v10\n s_mov_b32 s43, 7456541\n v_mul_hi_u32 v12, v11, s43")
            A("v_mul_u32_u24 v13, 576, v12\n v_sub_u32 v13, v11, v13\n v_mul_u32_u24 v13, 9216, v13\n v_lshlrev_b32 v12, 7, v12\n v_add3_u32 v13, v13, v12, s27")
            lim = 64 if t == 0 else 17
            A(f"v_and_b32 v11, 1, v10\n v_cmp_eq_u32 vcc, 0, v11\n v_cmp_gt_u32 s[56:57], {lim}, v2\n s_and_b64 s[58:59], vcc, s[56:57]\n s_andn2_b64 s[60:61], s[56:57], vcc")
            A(f"s_mov_b64 exec, s[58:59]\n buffer_load_dword v14, v13, s[12:15], 0 offen\n s_mov_b64 exec, s[60:61]\n buffer_load_dword v15, v13, s[16:19], 0 offen\n s_mov_b64 exec, -1")
    for i in range(16,80): A(f"v_mov_b32 v{i}, 0")
    A("v_lshrrev_b32 v6, 2, v2\n v_lshlrev_b32 v6, 7, v6\n v_bfe_u32 v7, v2, 3, 2\n s_and_b32 s26, s24, 1\n s_lshl_b32 s26, s26, 1\n v_xor_b32 v7, s26, v7\n v_lshlrev_b32 v7, 5, v7\n v_add_u32 v6, v6, v7\n v_and_b32 v7, 3, v2\n v_lshlrev_b32 v7, 3, v7\n v_add_u32 v6, v6, v7\n v_xor_b32 v11, 32, v6")
    A("s_mul_i32 s36, s24, 24*9216\n s_mul_i32 s37, s24, 3072\n v_add_u32 v3, s36, v3")
    def dma_i(i, u):
        srd = "s[12:15]" if u % 2 == 0 else "s[16:19]"
        return [f"s_add_u32 m0, s39, {i*1024}", f"s_nop 0", f"buffer_load_dwordx4 v{120+i}, {srd}, s38 offen {nt} lds"]
    for i in range(3): A(f"v_add_u32 v{120+i}, {8*i*9216}, v3")
    A("v_lshlrev_b32 v124, 4, v0\n s_lshl_b32 s26, s2, 12\n v_add_u32 v124, s26, v124\n v_add_u32 v125, 0x80000, v124\n v_and_b32 v125, 0xfffff, v125\n v_or_b32 v125, 0x80000, v125\n v_lshlrev_b32 v126, 4, v2\n v_add_u32 v126, 73728, v126")
    PRE=NS-2
    for u in range(NS):
        A(f"s_mov_b32 s38, {(u//12)*128 + ((u%12)//2)*96*9216}\n s_add_u32 s39, s37, {u*SLAB}")
        for i in range(3): L.extend(dma_i(i,u))
    A("s_waitcnt vmcnt(0)\n s_barrier")
    if dma and wait:
        pass
    A("s_memtime s[44:45]\n s_memrealtime s[46:47]\n s_waitcnt lgkmcnt(0)")
    A(f"s_mov_b32 s41, 0\n s_mov_b32 s64, 0\n s_mov_b32 s65, 0\n s_mov_b32 s42, {(NS//12)*128}")
    FR=[128,140]
    def rd(setr, mat, base):
        o=[]
        for kk in range(3):
            r=setr+4*kk; off=kk*4096
            bb = base if mat == 0 else "v9"
            o.append(f"ds_read_b64_tr_b16 v[{r}:{r+1}], {bb} offset:{off}")
            o.append(f"ds_read_b64_tr_b16 v[{r+2}:{r+3}], {bb} offset:{off+2048}")
        return o
    A("v_mov_b32 v8, v6\n v_mov_b32 v9, v11")
    L.extend(rd(FR[0],0,"v8"))
    A("s_waitcnt lgkmcnt(0)")
    nv = (1, 2, 4)[stag]
    for v in range(1, nv):
        A(f"s_and_b32 s26, s24, {nv-1}\n s_cmp_eq_u32 s26, {v}\n s_cbranch_scc1 L_loop{v}")
    for var in range(nv):
        A(f".p2align 6\nL_loop{var}:")
        for st in range(12):
            gaps=[[] for _ in range(24)]
            mm=[]
            for mat in range(2):
                cur=FR[mat]
                for rb in range(4):
                    for kk in range(3):
                        acc=16+32*(st&1)+16*mat+4*rb
                        mm.append(f"v_mfma_f32_16x16x32_bf16 v[{acc}:{acc+3}], v[{cur+4*kk}:{cur+4*kk+3}], {B[((st//2)*3+kk)*4+rb]}, v[{acc}:{acc+3}]")
            for i,r in enumerate(rd(FR[1],1,"v8")): gaps[i].append(r)
            gaps[11].append("s_waitcnt lgkmcnt(0)")
            gaps[23].append("s_waitcnt lgkmcnt(0)")
            gaps[8]+= [f"s_add_u32 s64, s64, {SLAB}", f"s_cmp_eq_u32 s64, {NS*SLAB}"]
            gaps[9]+= ["s_cselect_b32 s64, 0, s64", "v_add_u32 v8, s64, v6"]
            if dma and wait: gaps[12].append(f"s_waitcnt vmcnt({(3+(ne if extra and extra not in 'rw' else 0))*(NS-2)})")
            if barrier: gaps[12].append("s_barrier")
            for i,r in enumerate(rd(FR[0],0,"v8")): gaps[13+i].append(r)
            gaps[22].append("v_add_u32 v9, s64, v11")
            if dma:
                for i,p in enumerate(dpos):
                    stt = st if p>12 else st-1
                    uu=stt+NS
                    d=dma_i(i,uu)
                    if i==0:
                        k=(uu%12)//2; cadd=(uu//12)-(NS//12)
                        gaps[13]+=[f"s_add_u32 s38, s42, {cadd*128+k*96*9216}"]
                        gaps[14]+=[f"s_add_u32 s39, s37, s65"]
                        gaps[15]+=[f"s_add_u32 s65, s65, {SLAB}"]
                        gaps[16]+=[f"s_cmp_eq_u32 s65, {NS*SLAB}"]
                        gaps[17]+=["s_cselect_b32 s65, 0, s65"]
                    gaps[(p-1)%24].append(d[0])
                    if dma==1: gaps[p].append(d[2])
            ex={"v":"buffer_load_dwordx4 v[160:163], v124, s[20:23], 0 offen", "vs":"buffer_load_dwordx4 v[160:163], v124, s[20:23], 0 offen sc1", "a":"buffer_load_dwordx4 v[164:167], v124, s[20:23], 0 offen",
                "d":"buffer_load_dwordx4 v124, s[20:23], 0 offen lds", "s":"buffer_store_dwordx4 v[160:163], v125, s[8:11], 0 offen", "ss":"buffer_store_dwordx4 v[160:163], v125, s[8:11], 0 offen sc1",
                "r":"ds_read_b128 v[160:163], v126", "w":"ds_write_b128 v126, v[160:163]"}
            if extra:
                gaps[(10, 22, 6, 18)[var]].append(ex[extra])
                if ne>1: gaps[6]=[x for x in gaps[6]]; gaps[2].append(ex[extra])
            for i in range(24):
                A(mm[i]); L.extend(gaps[i])
        A(f"s_add_u32 s42, s42, 128\n s_cmp_ge_u32 s42, 512\n s_cselect_b32 s42, 0, s42")
        A(f"s_add_u32 s41, s41, 1\n s_cmp_lt_u32 s41, {ngroups}\n s_cbranch_scc1 L_loop{var}\n s_branch L_out")
    A("L_out:")
    A("s_nop 15\n s_memtime s[48:49]\n s_memrealtime s[50:51]\n s_waitcnt lgkmcnt(0) vmcnt(0)")
    A("s_sub_u32 s48, s48, s44\n s_sub_u32 s50, s50, s46\n s_sub_u32 s46, s46, s54\n s_lshl_b32 s3, s2, 4\n s_add_u32 s3, s3, s24\n s_lshl_b32 s3, s3, 4")
    A("v_mov_b32 v10, s3\n v_mov_b32 v4, s48\n v_mov_b32 v5, s50\n v_mov_b32 v6, s46\n v_mov_b32 v7, 0\n v_cmp_eq_u32 vcc, 0, v2\n s_and_saveexec_b64 s[26:27], vcc")
    A("buffer_store_dwordx4 v[4:7], v10, s[8:11], 0 offen\n s_waitcnt vmcnt(0)\n s_endpgm")
    A(f""".section .rodata,"a"
.p2align 6
.amdhsa_kernel mb_kernel
  .amdhsa_next_free_vgpr 512
  .amdhsa_next_free_sgpr 80
  .amdhsa_accum_offset 256
  .amdhsa_group_segment_fixed_size 0
  .amdhsa_kernarg_size 32
  .amdhsa_user_sgpr_count 2
  .amdhsa_user_sgpr_kernarg_segment_ptr 1
  .amdhsa_system_sgpr_workgroup_id_x 1
.end_amdhsa_kernel""")
    return "\n".join(L)+"\n", NS*SLAB+4096

cfgs=[dict(),dict(extra="s"),dict(extra="s",stag=1),dict(extra="s",stag=2),dict(extra="ss"),dict(extra="ss",stag=1),dict(extra="ss",stag=2)]
if len(sys.argv)>1:
    for c in cfgs:
        a,l=gen(**c); build(a,"mb_kernel",4,"mb_k.co")
    print("ok"); raise SystemExit
rng = np.random.default_rng(0)
out = DeviceBuffer(1<<20)
wg = DeviceBuffer.from_numpy(bf16(rng.standard_normal((576,4608))*0.4/24))
wu = DeviceBuffer.from_numpy(bf16(rng.standard_normal((576,4608))*0.4/24))
x = DeviceBuffer.from_numpy(bf16(rng.standard_normal((2048,576))))
big = DeviceBuffer(512<<20)
NG=5
for c in cfgs:
    a,lds=gen(**c, ngroups=NG); co=build(a,"mb_kernel",4,"mb_k.co"); k=AsmKernel(co,"mb_kernel")
    res=[]
    for cold in (0,0,0):
        if cold: _check(_hip.hipMemset(big._ptr, 1, 512<<20)); sync()
        k.launch((256,1,1),(256,1,1),kargs([out.ptr, wg.ptr, wu.ptr, x.ptr]), shared_mem=lds); sync()
        r = out.to_numpy(np.uint32, (256,16,4))[:, :4, :]
        cc = r[:,:,0].max(axis=1); t = r[:,:,1].max(axis=1); p=r[:,:,2].max(axis=1)
        res.append(f"{'C' if cold else 'W'} {np.median(cc)/(NG*144):.1f}/{cc.max()/(NG*144):.1f}cyc {np.median(cc)/np.median(t)*100:.0f}MHz {np.median(t)/100:.1f}/{t.max()/100:.1f}us pro {np.median(p)/100:.1f}")
    print(c, " | ".join(res[1:]))
    k.unload()
```
